```python
import torch

def _softmax(x, axis=-1):
    return torch.softmax(x, dim=axis)
def _gelu(x):
    return torch.nn.functional.gelu(x, approximate="tanh")
def _silu(x):
    return torch.nn.functional.silu(x)
def _sigmoid(x):
    return torch.sigmoid(x)
def _layernorm(x, axis=-1, eps=1e-5):
    m = x.mean(dim=axis, keepdim=True)
    v = x.var(dim=axis, keepdim=True, unbiased=False)
    return (x - m) / torch.sqrt(v + eps)
def _scatter_add(tgt, idx, src, axis=0):
    return tgt.clone().index_add_(axis, idx, src)
def _segment_sum(src, seg, n):
    out = torch.zeros((n,) + src.shape[1:], dtype=src.dtype)
    return out.index_add_(0, seg, src)
def _pad(x, pw):
    flat = tuple(v for pair in reversed(pw) for v in pair)
    return torch.nn.functional.pad(x, flat)

kernel_name = 'parallel_sum__ssm_conv_s4d__glu_gated_bilinear__prompt'

def setup_inputs():

    _w = (lambda a: (lambda t: t.to(torch.bfloat16) if t.is_floating_point() else t)(torch.as_tensor(a)))
    def _A_setup():
        Bsz, L, D, N = 1, 2048, 576, 128
        return {
            "u": _w((lambda *s: torch.randn(*s, dtype=torch.bfloat16) * 0.05)(Bsz, L, D)),
            "log_A_real": _w((lambda *s: torch.randn(*s, dtype=torch.bfloat16) * 3.2)(D, N) * 0.5),
            "A_imag": _w((lambda *s: torch.randn(*s, dtype=torch.bfloat16) * 0.05)(D, N) * 3.14),
            "C_real": _w((lambda *s: torch.randn(*s, dtype=torch.bfloat16) * 0.2)(D, N) / N ** 0.5),
            "C_imag": _w((lambda *s: torch.randn(*s, dtype=torch.bfloat16) * 0.2)(D, N) / N ** 0.5),
            "log_dt": _w((lambda *s: torch.randn(*s, dtype=torch.bfloat16) * 0.05)(D) * 0.5 - 4.0),
            "D_skip": _w((lambda *s: torch.randn(*s, dtype=torch.bfloat16) * 0.05)(D)),
        }
    _A_in = _A_setup()

    def _B_setup():
        B, S, D, F = 1, 2048, 576, 4608
        return {
            "x": _w((lambda *s: torch.randn(*s, dtype=torch.bfloat16) * 0.05)(B, S, D)),
            "w_gate": _w((lambda *s: torch.randn(*s, dtype=torch.bfloat16) * 0.4)(D, F) * (D ** -0.5)),
            "w_up": _w((lambda *s: torch.randn(*s, dtype=torch.bfloat16) * 0.4)(D, F) * (D ** -0.5)),
            "w_down": _w((lambda *s: torch.randn(*s, dtype=torch.bfloat16) * 0.4)(F, D) * (F ** -0.5)),
        }
    _B_in = _B_setup()

    return {
        "A_u": _A_in["u"],
        "A_log_A_real": _A_in["log_A_real"],
        "A_A_imag": _A_in["A_imag"],
        "A_C_real": _A_in["C_real"],
        "A_C_imag": _A_in["C_imag"],
        "A_log_dt": _A_in["log_dt"],
        "A_D_skip": _A_in["D_skip"],
        "B_x": _B_in["x"],
        "B_w_gate": _B_in["w_gate"],
        "B_w_up": _B_in["w_up"],
        "B_w_down": _B_in["w_down"],
    }

def reference(A_u, A_log_A_real, A_A_imag, A_C_real, A_C_imag, A_log_dt, A_D_skip, B_x, B_w_gate, B_w_up, B_w_down):
    def _A_ref(u, log_A_real, A_imag, C_real, C_imag, log_dt, D_skip):
        L = u.shape[1]
        dt = torch.exp(log_dt)
        A = -torch.exp(log_A_real) + 1j * A_imag
        C = (C_real + 1j * C_imag) * dt[:, None]
        pos = (lambda x, dt: x.to(dt))(torch.arange(L), log_dt.dtype)
        P = torch.exp((A * dt[:, None])[:, :, None] * pos[None, None, :])
        K = 2.0 * torch.einsum("dn,dnl->dl", C, P).real
        L2 = 2 * L
        u_t = (lambda x, *d: x.permute(*d))(u, 0, 2, 1)
        Kf = (lambda x, *a, **k: torch.fft.rfft(x.float(), *a, **k))(K, L2)
        Uf = (lambda x, *a, **k: torch.fft.rfft(x.float(), *a, **k))(u_t, L2)
        y = (lambda x, *a, **k: torch.fft.irfft(x, *a, **k).to(torch.bfloat16))(Uf * Kf[None, :, :], L2)[:, :, :L]
        y = (lambda x, *d: x.permute(*d))(y, 0, 2, 1)
        return y + u * D_skip[None, None, :]

    def _B_ref(x, w_gate, w_up, w_down):
        g = torch.einsum("bsd,df->bsf", x, w_gate)
        u = torch.einsum("bsd,df->bsf", x, w_up)
        h = g * u
        return torch.einsum("bsf,fd->bsd", h, w_down)

    x = A_u
    xn = _layernorm(x, axis=-1)
    return x + _A_ref(xn, A_log_A_real, A_A_imag, A_C_real, A_C_imag, A_log_dt, A_D_skip) + _B_ref(xn, B_w_gate, B_w_up, B_w_down)
```

```python
class Em:
    def __init__(self):
        self.l = []
        self.vmq = []
        self.lgq = []
        self.nlab = 0
    def raw(self, s):
        for x in s.split('\n'):
            x = x.strip()
            if x: self.l.append(x if x.endswith(':') else '    ' + x)
    __call__ = raw
    def vm(self, s, tag=None):
        self.raw(s); self.vmq.append(tag)
    def lg(self, s, tag=None):
        self.raw(s); self.lgq.append(tag)
    def _n(self, q, tag):
        idx = [i for i, t in enumerate(q) if t == tag]
        if not idx: return None
        return len(q) - 1 - idx[-1]
    def wait(self, vm=None, lg=None):
        parts = []
        if vm is not None:
            n = 0 if vm == 'all' else self._n(self.vmq, vm)
            if n is not None:
                n = min(n, 63)
                parts.append(f'vmcnt({n})'); self.vmq = self.vmq[len(self.vmq)-n:] if n else []
        if lg is not None:
            n = 0 if lg == 'all' else self._n(self.lgq, lg)
            if n is not None:
                n = min(n, 15)
                parts.append(f'lgkmcnt({n})'); self.lgq = self.lgq[len(self.lgq)-n:] if n else []
        if parts: self.raw('s_waitcnt ' + ' '.join(parts))
    def do(self, it):
        if isinstance(it, str): self.raw(it)
        elif isinstance(it, list):
            for x in it: self.do(x)
        elif callable(it): it(self)
        elif it[0] == 'vm': self.vm(it[1], it[2])
        elif it[0] == 'lg': self.lg(it[1], it[2])
        elif it[0] == 'w': self.wait(it[1], it[2])
        else: raise ValueError(it)
    def label(self, p='L'):
        self.nlab += 1
        return f'{p}_{self.nlab}'
    def text(self): return '\n'.join(self.l) + '\n'

class Stream:
    def __init__(self, cap=2):
        self.m = []; self.pre = {}; self.gap = {}; self.cap = cap
    def mf(self, s):
        self.m.append(s); return len(self.m)-1
    def before(self, i, it): self.pre.setdefault(i, []).append(it)
    def load(self, i):
        return len(self.gap.get(i, [])) + len(self.pre.get(i+1, []))
    def put(self, i, it): self.gap.setdefault(i, []).append(it)
    def place(self, items, start, end=None, step=1, cap=None):
        cap = cap or self.cap
        g = start
        for it in items:
            while self.load(g) >= cap: g += 1
            if end is not None and g > end:
                g = end
            self.put(g, it)
            if step > 1: g += step
        return g
    def emit(self, e):
        n = len(self.m)
        for it in self.gap.get(-1, []): e.do(it)
        for i, s in enumerate(self.m):
            for it in self.pre.get(i, []): e.do(it)
            e.raw(s)
            for it in self.gap.get(i, []): e.do(it)
        for g in sorted(k for k in self.gap if k >= n):
            for it in self.gap[g]: e.do(it)
        for it in self.pre.get(n, []): e.do(it)
```

```python
KN = 'parallel_sum__ssm_conv_s4d__glu_gated_bilinear__prompt_kernel'
HDR = open('parallel_sum__ssm_conv_s4d__glu_gated_bilinear__prompt.s.ref').read().split('; Override launch')[0]
class Asm:
    def __init__(self):
        self.l = []
    def __call__(self, s=''):
        for x in s.split('\n'):
            x = x.strip()
            if x: self.l.append(x if x.endswith(':') else '    ' + x)
    def text(self): return '\n'.join(self.l) + '\n'
def kernel_head(name):
    return f'.globl {name}\n.p2align 8\n.type {name},@function\n{name}:\n'
def kernel_desc(name, vgpr, accum, sgpr=102):
    return f'''.p2align 6
.amdhsa_kernel {name}
  .amdhsa_next_free_vgpr {vgpr}
  .amdhsa_next_free_sgpr {sgpr}
  .amdhsa_accum_offset {accum}
  .amdhsa_group_segment_fixed_size 0
  .amdhsa_kernarg_size 112
  .amdhsa_user_sgpr_count 2
  .amdhsa_user_sgpr_kernarg_segment_ptr 1
  .amdhsa_system_sgpr_workgroup_id_x 1
  .amdhsa_float_denorm_mode_32 3
.end_amdhsa_kernel
'''
def file_text(kernels):
    t = HDR
    if len(kernels) == 1 and kernels[0][0] == KN:
        n, g, b, lds = kernels[0][:4]
        t += f'; @launch grid=({g},1,1) block=({b},1,1) lds={lds}\n'
    else:
        for n, g, b, lds, *_ in kernels:
            t += f'; @launch kernel={n} grid=({g},1,1) block=({b},1,1) lds={lds}\n'
    t += '.amdgcn_target "amdgcn-amd-amdhsa--gfx950"\n.text\n'
    seen = set()
    for n, g, b, lds, body, v, a in kernels:
        if n in seen: continue
        seen.add(n)
        t += kernel_head(n) + body
    t += '.section .rodata,"a"\n'
    seen = set()
    for n, g, b, lds, body, v, a in kernels:
        if n in seen: continue
        seen.add(n)
        t += kernel_desc(n, v, a)
    return t
```

```python
import re, sys
def regs(op):
    op = op.strip()
    op = op.lstrip('-').replace('|', '')
    m = re.match(r'^abs\((.*)\)$', op)
    if m: op = m.group(1)
    m = re.match(r'^([vas])\[(\d+):(\d+)\]$', op)
    if m: return {(m.group(1), i) for i in range(int(m.group(2)), int(m.group(3))+1)}
    m = re.match(r'^([vas])(\d+)$', op)
    if m: return {(m.group(1), int(m.group(2)))}
    if op == 'vcc': return {('s', 'vcc')}
    if op == 'm0': return {('s', 'm0')}
    if op == 'exec': return {('s', 'exec')}
    return set()
TRANS = ('v_exp_', 'v_log_', 'v_rcp_', 'v_rsq_', 'v_sqrt_', 'v_sin_', 'v_cos_')
def parse(line):
    line = line.split(';')[0].strip()
    if not line or line.endswith(':') or line.startswith('.'): return None
    p = line.split(None, 1)
    mn = p[0]; rest = p[1] if len(p) > 1 else ''
    rest = re.sub(r'(\w+:\[[^\]]*\])', lambda m: m.group(1).replace(',', '|'), rest)
    ops = [x.strip() for x in rest.split(',')]
    if ops:
        last = ops[-1].split()
        mods = last[1:] if last else []
        ops[-1] = last[0] if last else ''
    d = dict(mn=mn, line=line, w=set(), r=set(), mods=' '.join(mods), ops=ops)
    R = [regs(o) for o in ops]
    U = lambda l: set().union(*l) if l else set()
    if mn.startswith('v_mfma'):
        d['k'] = 'mfma'; d['w'] = R[0]; d['ab'] = R[1] | R[2]; d['c'] = R[3]; d['r'] = d['ab'] | d['c']
    elif mn.startswith('v_'):
        d['k'] = 'valu'
        if mn.startswith(('v_swap', 'v_permlane16_swap', 'v_permlane32_swap')):
            d['w'] = R[0] | R[1]; d['r'] = R[0] | R[1]
        elif mn.startswith(('v_add_co', 'v_sub_co', 'v_addc_co', 'v_subb_co')):
            d['w'] = R[0] | R[1]; d['r'] = U(R[2:])
        else:
            d['w'] = R[0]; d['r'] = U(R[1:])
            if mn.startswith(('v_fmac', 'v_writelane', 'v_mac', 'v_dot2c', 'v_pk_fmac')) or 'dpp' in mn or 'row_' in d['mods'] or 'quad_perm' in d['mods']: d['r'] |= R[0]
            if mn.startswith('v_cmpx'): d['w'] |= {('s', 'exec')}
    elif mn.startswith(('buffer_', 'global_')):
        d['k'] = 'vmem'
        if 'lds' in d['mods'].split(): d['r'] = U(R) | {('s', 'm0')}; d['dma'] = 1
        elif 'load' in mn: d['w'] = R[0]; d['r'] = U(R[1:])
        else:
            d['r'] = U(R)
            d['data'] = R[0] if mn.startswith('buffer_') else R[1]
    elif mn.startswith('ds_'):
        d['k'] = 'ds'
        if 'read' in mn or 'permute' in mn or 'swizzle' in mn: d['w'] = R[0]; d['r'] = U(R[1:])
        else: d['r'] = U(R)
    else:
        d['k'] = 'salu'
        if mn.startswith(('s_cmp', 's_cbranch', 's_branch', 's_waitcnt', 's_barrier', 's_nop', 's_endpgm', 's_sleep', 's_setprio')): d['r'] = U(R)
        else: d['w'] = R[0]; d['r'] = U(R[1:])
        if 'saveexec' in mn: d['w'] |= {('s', 'exec')}
    d['ws'] = int(ops[0], 0)+1 if mn == 's_nop' else 1
    return d
def fix(text, log=None):
    out = []; ins = []
    for l in text.split('\n'):
        c = parse(l)
        if c:
            b = check(ins[-12:] + [c], last=True)
            if b:
                n = max(x[0] for x in b)
                if log is not None: log.append((n, b[0][1]))
                nop = f'    s_nop {n-1}'
                out.append(nop); ins.append(parse(nop))
            ins.append(c)
        out.append(l)
    return '\n'.join(out)
def check(text, last=False):
    ins = text if last else [x for x in (parse(l) for l in text.split('\n')) if x]
    bad = []
    for i, c in enumerate(ins):
        if last and i < len(ins)-1: continue
        dist = 0
        for j in range(i-1, max(i-12, -1), -1):
            p = ins[j]
            need = 0; why = ''
            def N(n, s):
                nonlocal need, why
                if n > need: need, why = n, s
            isdpp = c['k'] == 'valu' and ('dpp' in c['mn'] or 'row_' in c['mods'] or 'quad_perm' in c['mods'] or 'wave_' in c['mods'])
            if p['k'] == 'mfma':
                if c['k'] == 'mfma':
                    if p['w'] & c['ab']: N(8, 'mfma D->AB')
                    if p['w'] & c['c'] and p['w'] != c['c']: N(6, 'mfma D->C partial')
                    if p['w'] & c['w'] and not c['c'] : N(0, '')
                elif c['k'] in ('valu', 'vmem', 'ds'):
                    if p['w'] & (c['r'] | c['w']): N(8, 'mfma D->valu/mem')
                    if c['k'] == 'valu' and p['c'] & c['w']: N(3, 'mfma C WAR')
            if p['k'] == 'valu':
                vw = {x for x in p['w'] if x[0] != 's'}; sw = {x for x in p['w'] if x[0] == 's'}
                if c['k'] == 'mfma' and vw & c['r']: N(2, 'valu->mfma')
                if c['k'] == 'mfma' and ('s', 'exec') in sw: N(4, 'exec->mfma')
                if c['k'] == 'valu':
                    if c['mn'].startswith('v_permlane') and vw & c['r']: N(2, 'valu->permlane')
                    if isdpp and vw & c['r']: N(2, 'valu->dpp')
                    if c['mn'].startswith(('v_readlane', 'v_readfirstlane')) and vw & c['r']: N(1, 'valu->readlane')
                    if p['mn'].startswith(TRANS) and vw & c['r']: N(1, 'trans->use')
                    if sw & c['r']: N(4 if c['mn'].startswith(('v_readlane', 'v_writelane')) else 2, 'valu sgpr->valu')
                    if ('sdwa' in p['mn'] or 'dst_sel' in p['mods'] or 'op_sel' in p['mods']) and not p['mn'].startswith('v_pk_') and vw & (c['r'] | c['w']): N(1, 'opsel/sdwa')
                    if p['mn'].startswith('v_dot') and vw & (c['r'] | c['w']) and p['mn'] != c['mn']: N(3, 'dot')
                if c['k'] == 'vmem' and sw & c['r']: N(5, 'valu sgpr->vmem')
            if p['k'] == 'salu' and ('s', 'm0') in p['w'] and c.get('dma'): N(1, 'm0->dma')
            if p['k'] == 'vmem' and 'data' in p and len(p['data']) > 2 and p['data'] & c['w']: N(2 if c['k'] == 'valu' else 1, 'store data WAR')
            if need > dist:
                m = f'{why}: need {need} have {dist}: [{p["line"]}] -> [{c["line"]}]'
                bad.append((need-dist, m) if last else m)
            dist += p['ws']
            if dist >= 8: break
    return bad
if __name__ == '__main__':
    b = check(open(sys.argv[1]).read())
    print('\n'.join(b[:40])); print(len(b), 'hazards')
```

```python
import sys, hz
from g import *
from em import *

XN_OFF = 0; XT_OFF = 0x240000; Y_OFF = 0x480000; H_OFF = 0x800000; P_OFF = 0x1A00000
P8_OFF = 0x2000000; FL_OFF = 0x2100000; EP_OFF = 0x2180000; PROF_OFF = 0x2200000
PK_OFF = 0x2400000
WS_BYTES = 0x2A00000; OOB = 0x8000000
NS = 6; SLOT = 16384

sB, sW = 2, 3
sWA = 8; sWD = 16; sWS = 20; sX = 24; sOUT = 28
sXCD, sJ, sRH, sFQ, sRB, sC = 32, 33, 34, 35, 36, 37
sM1, sM2 = 38, 39
sKW = 40
sKX = 49
sHST = 58
sTAG = 59
sT = 60
sK2 = 70
sHL = 79
sM3, sM4 = 88, 89
sFP = 90
sFC = 91
sMB, sNB = 92, 93
sCNT = 94
sPI = 95
sRW = 96
sP8 = 97
sPS = 12
FLY = FL_OFF + 0x10000; FLN = FL_OFF + 0x11000
G2SLOT = [40960, 69632, 12288, 98304, 126976]
sKB, sYS, sFY, sXS, sROLE, sLN = 4, 5, 6, 7, 0, 1
FLT = FL_OFF + 0x12000
CONV0 = 98304; CSZ = 21248; KCS = 4160; XAR = 16640; TRS = 544
LNS = 81920; LNR = 1216
SPIN = 20000
vL = 1
vA = 2
vA2 = 10
vD = 14
vD2 = 18
vX = 19
vH = 23
vU = 140
vU8 = 148
vCA, vCB, vYA = 27, 28, 29
vPO = 30
vH4 = 34
vF0 = 35
vP = 36
vFA = 37
vTG = 38
vT = 128
vPR = 0
vB = 2
vB8 = [8, 9, 16]
vSP = 10
vSN = 248
vFF = 39
vXY = 72
vIN = 136
vAX, vAO, vAX8, vAO8, vAY = 17, 18, 20, 21, 22
vA2C = 128
vW2 = 200
vE = 40
vW = 72
vXF = 96
vACC = 128

def frag(n):
    return f'a[{4*n}:{4*n+3}]' if n < 64 else f'v[{vXF+4*(n-64)}:{vXF+4*(n-64)+3}]'
def r4(b): return f'v[{b}:{b+3}]'
def r2(b): return f'v[{b}:{b+1}]'
import struct
def fhex(x): return hex(struct.unpack('<I', struct.pack('<f', x))[0])
def srd(s): return f's[{s}:{s+3}]'

class Gen:
    def __init__(self, **o):
        self.o = dict(prof=1, rot=1, xup=3, sc1=1, g2=1, f1at=12, rot2=1, inat=10, dstep=5, mstep=4, lstep=4, npre=3)
        self.o.update(o)
        self.e = Em()
        self.nst = 0
    def stamp(self, e=None):
        if not self.o['prof']: return
        e = self.e
        i = self.nst; self.nst += 1
        assert i < 32
        e(f's_memtime s[98:99]\ns_memrealtime s[100:101]')
        e.wait(lg='all')
        e(f'v_writelane_b32 v{vPR}, s98, {2*i}\nv_writelane_b32 v{vPR}, s100, {2*i+1}')
    def prof_out(self):
        if not self.o['prof']: return
        e = self.e
        e(f'''s_lshl_b32 s{sT}, s{sB}, 2
        s_add_u32 s{sT}, s{sT}, s{sW}
        s_lshl_b32 s{sT}, s{sT}, 8
        s_add_u32 s{sT}, s{sT}, {PROF_OFF}
        v_lshlrev_b32 v{vP}, 2, v{vL}
        buffer_store_dword v{vPR}, v{vP}, {srd(sWS)}, s{sT} offen''')

    def setup(self):
        e = self.e; T = sT
        e(f"""
        s_cmp_ge_u32 s2, 256
        s_cbranch_scc1 END
        s_load_dwordx2 s[{sX}:{sX+1}], s[0:1], 0
        s_load_dwordx8 s[72:79], s[0:1], 8
        s_load_dwordx4 s[80:83], s[0:1], 40
        s_load_dwordx4 s[4:7], s[0:1], 64
        s_load_dwordx4 s[{T}:{T+3}], s[0:1], 80
        s_load_dwordx2 s[{sWS}:{sWS+1}], s[0:1], 104
        v_lshrrev_b32 v2, 6, v0
        v_and_b32 v{vL}, 63, v0
        v_readfirstlane_b32 s{sW}, v2
        v_lshrrev_b32 v3, 5, v0
        v_and_b32 v4, 31, v0
        v_mul_u32_u24 v5, 1152, v3
        v_lshl_add_u32 v6, v4, 4, v5
        v_lshl_add_u32 v7, v4, 2, v5
        v_mul_u32_u24 v5, {LNR}, v3
        v_add_u32 v5, {LNS}, v5
        v_lshl_add_u32 v46, v4, 4, v5
        v_lshl_add_u32 v47, v4, 2, v5
        s_mul_i32 s{T+4}, s{sB}, 9216
        s_mov_b32 s{sX+2}, {2048*1152}
        s_mov_b32 s{sX+3}, 0x20000
        s_and_b32 s{sXCD}, s{sB}, 7
        s_lshr_b32 s{sJ}, s{sB}, 3
        s_lshr_b32 s{sC}, s{sJ}, 2
        s_and_b32 s{sRB}, s{sJ}, 3
        s_lshl_b32 s{T+5}, s{sJ}, 1
        s_add_u32 s{T+5}, s{T+5}, s{sW}
        s_add_u32 s{T+6}, s{sC}, 64
        s_cmp_lt_u32 s{sW}, 2
        s_cselect_b32 s{T+5}, s{T+5}, s{T+6}
        s_mul_i32 s{T+6}, s{sXCD}, 72
        s_add_u32 s{T+5}, s{T+5}, s{T+6}
        s_lshl_b32 s{T+6}, s{T+5}, 8
        v_lshl_add_u32 v8, v{vL}, 2, s{T+6}
        s_lshl_b32 s{T+6}, s{T+5}, 1
        v_mov_b32 v9, s{T+6}
        s_waitcnt lgkmcnt(0)""")
        e.vm(f'buffer_load_dwordx4 v[48:51], v6, {srd(sX)}, s{T+4} offen', 'x')
        e.vm(f'buffer_load_dwordx4 v[52:55], v6, {srd(sX)}, s{T+4} offen offset:512', 'x')
        e.vm(f'buffer_load_dword v56, v7, {srd(sX)}, s{T+4} offen offset:1024', 'x')
        for k in range(4): e.vm(f'global_load_dword v{40+k}, v8, s[{72+2*k}:{73+2*k}]', 'par')
        for k in range(2): e.vm(f'global_load_ushort v{44+k}, v9, s[{80+2*k}:{81+2*k}]', 'par')
        e(f"""s_add_u32 s{T+6}, s{sWS}, {EP_OFF}
        s_addc_u32 s{T+7}, s{sWS+1}, 0
        s_load_dword s{sTAG}, s[{T+6}:{T+7}], 0
        s_cmp_ge_u32 s{sW}, 2
        s_cselect_b32 s{sWA}, s6, s4
        s_cselect_b32 s{sWA+1}, s7, s5
        s_mov_b32 s{sWA+2}, {576*9216}
        s_mov_b32 s{sWA+3}, 0x20000
        s_mov_b32 s{sWD}, s{T}
        s_mov_b32 s{sWD+1}, s{T+1}
        s_mov_b32 s{sWD+2}, {4608*1152}
        s_mov_b32 s{sWD+3}, 0x20000
        s_mov_b32 s{sWS+2}, {WS_BYTES}
        s_mov_b32 s{sWS+3}, 0x20000
        s_mov_b32 s{sOUT}, s{T+2}
        s_mov_b32 s{sOUT+1}, s{T+3}
        s_mov_b32 s{sOUT+2}, {2048*1152}
        s_mov_b32 s{sOUT+3}, 0x20000
        s_cmp_eq_u32 s{sRB}, 0
        s_cselect_b32 s{sROLE}, 3, 2
        s_cmp_lt_u32 s{sW}, s{sROLE}
        s_cselect_b32 s{sROLE}, 1, 0
        s_cselect_b32 s{T+6}, 0, {OOB}
        s_lshl_b32 s{sYS}, s{T+5}, 12
        s_add_u32 s{sYS}, s{sYS}, {Y_OFF}
        s_add_u32 s{sYS}, s{sYS}, s{T+6}
        s_lshl_b32 s{sFY}, s{T+5}, 2
        s_add_u32 s{sFY}, s{sFY}, {FLY}
        s_add_u32 s{sFY}, s{sFY}, s{T+6}
        s_lshl_b32 s{sXS}, s{T+5}, 4
        s_add_u32 s{sXS}, s{sXS}, {XT_OFF}
        s_add_u32 s{sXS}, s{sXS}, s{T+6}
        s_mul_i32 s{sKB}, s{sW}, {CSZ}
        s_add_u32 s{sKB}, s{sKB}, {CONV0}
        s_and_b32 s{sRH}, s{sXCD}, 1
        s_lshr_b32 s{sFQ}, s{sXCD}, 1
        s_lshl_b32 s{sM1}, s{sRH}, 2
        s_add_u32 s{sRB}, s{sRB}, s{sM1}
        s_lshl_b32 s{sLN}, s{sRB}, 2
        s_add_u32 s{sLN}, s{sLN}, s{sW}
        s_lshl_b32 s{sLN}, s{sLN}, 5
        s_add_u32 s{sLN}, s{sLN}, {FLN}
        """)
        self.slow = []
    def red32(self, v, t):
        e = self.e
        for m in ('quad_perm:[1,0,3,2]', 'quad_perm:[2,3,0,1]', 'row_half_mirror', 'row_mirror'):
            e(f'v_add_f32_dpp v{v}, v{v}, v{v} {m} row_mask:0xf bank_mask:0xf')
        e(f'v_mov_b32 v{t}, v{v}\nv_permlane16_swap_b32 v{v}, v{t}\nv_add_f32 v{v}, v{v}, v{t}')
    def ln(self):
        e = self.e; R = 48; F = 60; S = 80
        e.wait(vm='x')
        for k in range(9):
            e(f'v_lshlrev_b32 v{F+2*k}, 16, v{R+k}\nv_and_b32 v{F+2*k+1}, 0xffff0000, v{R+k}')
        e(f'v_pk_add_f32 {r2(S)}, {r2(F)}, {r2(F+2)}\nv_pk_add_f32 {r2(S+2)}, {r2(F+4)}, {r2(F+6)}')
        for k in range(4, 9): e(f'v_pk_add_f32 {r2(S+2*(k & 1))}, {r2(S+2*(k & 1))}, {r2(F+2*k)}')
        e(f'v_pk_add_f32 {r2(S)}, {r2(S)}, {r2(S+2)}\nv_add_f32 v{S}, v{S}, v{S+1}')
        self.red32(S, S+1)
        e(f'v_mul_f32 v{S}, {fhex(-1/576)}, v{S}')
        for k in range(9): e(f'v_pk_add_f32 {r2(F+2*k)}, {r2(F+2*k)}, {r2(S)} op_sel_hi:[1,0]')
        for k in range(2): e(f'v_pk_mul_f32 {r2(S+2+2*k)}, {r2(F+2*k)}, {r2(F+2*k)}')
        for k in range(2, 9): e(f'v_pk_fma_f32 {r2(S+2+2*(k & 1))}, {r2(F+2*k)}, {r2(F+2*k)}, {r2(S+2+2*(k & 1))}')
        e(f'v_pk_add_f32 {r2(S)}, {r2(S+2)}, {r2(S+4)}\nv_add_f32 v{S}, v{S}, v{S+1}')
        self.red32(S, S+1)
        e(f'v_mov_b32 v{S+1}, {fhex(1e-5)}\nv_fmac_f32 v{S+1}, {fhex(1/576)}, v{S}\nv_rsq_f32 v{S}, v{S+1}')
        for k in range(9): e(f'v_pk_mul_f32 {r2(F+2*k)}, {r2(F+2*k)}, {r2(S)} op_sel_hi:[1,0]')
        for k in range(9):
            e(f'v_cvt_pk_bf16_f32 v{R+k}, v{F+2*k}, v{F+2*k+1}')
            if k == 3: e.lg(f'ds_write_b128 v46, {r4(R)}')
            if k == 7: e.lg(f'ds_write_b128 v46, {r4(R+4)} offset:512')
        e.lg(f'ds_write_b32 v47, v{R+8} offset:1024')
        e.wait(lg='all'); e('s_barrier')
    def service(self):
        e = self.e; T = sT; t = 40
        e(f"""v_and_b32 v{t}, 7, v{vL}
        v_lshrrev_b32 v{t+1}, 3, v{vL}
        v_mul_u32_u24 v{t+2}, {LNR}, v{t}
        v_lshl_add_u32 v{t+2}, v{t+1}, 4, v{t+2}
        v_add_u32 v{t+2}, {LNS}, v{t+2}""")
        for n in range(9): e.lg(f'ds_read_b128 {r4(64+4*n)}, v{t+2} offset:{128*n}', ('a', n))
        e(f"""v_lshlrev_b32 v{t}, 4, v{t}
        v_lshl_add_u32 v{t}, v{t+1}, 8, v{t}
        s_lshr_b32 s{T}, s{sB}, 1
        s_mul_i32 s{T}, s{T}, 18432
        s_and_b32 s{T+1}, s{sB}, 1
        s_lshl_b32 s{T+1}, s{T+1}, 7
        s_add_u32 s{T}, s{T}, s{T+1}
        v_bfe_u32 v{t+3}, v{vL}, 2, 2
        v_mul_u32_u24 v{t+3}, {LNR}, v{t+3}
        v_lshrrev_b32 v{t+4}, 4, v{vL}
        v_lshl_add_u32 v{t+3}, v{t+4}, 5, v{t+3}
        v_and_b32 v{t+4}, 3, v{vL}
        v_lshl_add_u32 v{t+3}, v{t+4}, 3, v{t+3}
        v_add_u32 v{t+3}, {LNS}, v{t+3}""")
        assert XN_OFF == 0
        for n in range(9):
            e.wait(lg=('a', n))
            e.vm(f'buffer_store_dwordx4 {r4(64+4*n)}, v{t}, {srd(sWS)}, s{T} offen offset:{2048*(n & 1)} sc1', 'XN')
            if n & 1: e(f's_add_u32 s{T}, s{T}, 4096')
        for n in range(9):
            for h in range(2): e.lg(f'ds_read_b64_tr_b16 {r2(128+4*n+2*h)}, v{t+3} offset:{128*n+4*LNR*h}', ('b', n))
        e(f's_mul_i32 s{T}, s{sB}, 9216\ns_add_u32 s{T}, s{T}, {XT_OFF}\ns_lshl_b32 s{T+1}, s{sB}, 2\ns_add_u32 s{T+1}, s{T+1}, {FLN}\ns_add_u32 s{T+2}, s{T+1}, {FLT-FLN}')
        for n in range(9):
            e.wait(lg=('b', n))
            e.vm(f'buffer_store_dwordx4 {r4(128+4*n)}, v{vH}, {srd(sWS)}, s{T} offen offset:{1024*(n & 3)} sc1', 'XT')
            if n & 3 == 3: e(f's_add_u32 s{T}, s{T}, 4096')
        e('s_mov_b64 exec, 1')
        e.wait(vm='XN'); e.vm(f'buffer_store_dword v{vTG}, off, {srd(sWS)}, s{T+1} sc1')
        e.wait(vm='XT'); e.vm(f'buffer_store_dword v{vTG}, off, {srd(sWS)}, s{T+2} sc1')
        e('s_mov_b64 exec, -1')
    def kgen(self):
        e = self.e; T = sT
        LA, AI, CR, CI, DT, DS = 40, 41, 42, 43, 44, 45
        ZA, ZB = 46, 48; E16 = 50; U = [54, 58]; G = [62, 66]; CV = [70, 72, 74]
        D = 76; UF = 108; VF = 140; AT = lambda j: 188+4*j
        t = VF
        WA = 40; RA = [41, 42, 43, 44]
        L2E = fhex(1.4426950408889634)
        e.wait(vm='par')
        e(f"""v_lshlrev_b32 v{DT}, 16, v{DT}
        v_lshlrev_b32 v{t}, 16, v{LA}
        v_and_b32 v{t+1}, 0xffff0000, v{LA}
        v_mul_f32 v{DT}, {L2E}, v{DT}
        v_mul_f32 v{t}, {L2E}, v{t}
        v_mul_f32 v{t+1}, {L2E}, v{t+1}
        v_exp_f32 v{DT}, v{DT}
        v_exp_f32 v{t}, v{t}
        v_exp_f32 v{t+1}, v{t+1}
        v_lshlrev_b32 v{ZB}, 16, v{AI}
        v_and_b32 v{ZB+1}, 0xffff0000, v{AI}
        v_cvt_pk_bf16_f32 v{DT}, v{DT}, v{DT}
        v_cvt_pk_bf16_f32 v{t}, v{t}, v{t+1}
        v_lshlrev_b32 v{U[0]}, 16, v{CR}
        v_and_b32 v{U[0]+1}, 0xffff0000, v{CR}
        v_lshlrev_b32 v{U[0]+2}, 16, v{CI}
        v_and_b32 v{U[0]+3}, 0xffff0000, v{CI}
        v_lshlrev_b32 v{DT}, 16, v{DT}
        v_lshlrev_b32 v{ZA}, 16, v{t}
        v_and_b32 v{ZA+1}, 0xffff0000, v{t}
        v_pk_mul_f32 {r2(ZB)}, {r2(ZB)}, {r2(DT)} op_sel_hi:[1,0]
        v_pk_mul_f32 {r2(ZA)}, {r2(ZA)}, {r2(DT)} op_sel_hi:[1,0]
        v_add_f32 v{DT}, v{DT}, v{DT}
        v_mul_f32 v{ZA}, {fhex(-1.4426950408889634)}, v{ZA}
        v_mul_f32 v{ZA+1}, {fhex(-1.4426950408889634)}, v{ZA+1}
        v_mul_f32 v{ZB}, 0.15915494, v{ZB}
        v_mul_f32 v{ZB+1}, 0.15915494, v{ZB+1}
        v_pk_mul_f32 {r2(U[0])}, {r2(U[0])}, {r2(DT)} op_sel_hi:[1,0]
        v_pk_mul_f32 {r2(U[0]+2)}, {r2(U[0]+2)}, {r2(DT)} op_sel_hi:[1,0] neg_lo:[1,0] neg_hi:[1,0]
        v_lshlrev_b32 v{DS}, 16, v{DS}
        v_cmp_eq_u32 vcc, 0, v{vL}""")
        seeds = [(AT(1), 1.0), (E16, 16.0), (G[1], 256.0)]
        for k, (d, p) in enumerate(seeds):
            for m in range(2):
                e(f'v_mul_f32 v{t+4*k+m}, {fhex(p)}, v{ZA+m}\nv_mul_f32 v{t+4*k+2+m}, {fhex(p)}, v{ZB+m}')
        e(f'v_cndmask_b32 v{DS}, 0, v{DS}, vcc')
        for k in range(3):
            for m in range(2): e(f'v_exp_f32 v{t+4*k+m}, v{t+4*k+m}\nv_fract_f32 v{t+4*k+2+m}, v{t+4*k+2+m}')
        for k, (d, p) in enumerate(seeds):
            for m in range(2): e(f'v_cos_f32 v{d+m}, v{t+4*k+2+m}\nv_sin_f32 v{d+2+m}, v{t+4*k+2+m}')
        e(f"""v_lshl_add_u32 v{WA}, v{vL}, 3, s{sKB}
        v_and_b32 v{t+12}, 15, v{vL}
        v_lshrrev_b32 v{t+13}, 4, v{vL}
        v_lshl_add_u32 v{t+13}, v{t+13}, 4, s{sKB}
        v_mov_b32 v{t+15}, {TRS}
        v_mad_u32_u24 v{RA[0]}, v{t+12}, v{t+15}, v{t+13}""")
        for k, (d, p) in enumerate(seeds):
            ng = ' neg_lo:[1,0] neg_hi:[1,0]' if k == 1 else ''
            e(f'v_pk_mul_f32 {r2(d)}, {r2(d)}, {r2(t+4*k)}\nv_pk_mul_f32 {r2(d+2)}, {r2(d+2)}, {r2(t+4*k)}{ng}')
        for sft in range(1, 4):
            e(f"""v_bfe_u32 v{t+14}, v{vL}, {sft}, 1
            v_add3_u32 v{t+14}, v{t+14}, v{t+12}, {2**(sft-1)-1}
            v_lshrrev_b32 v{t+14}, {sft}, v{t+14}
            v_mad_u32_u24 v{RA[sft]}, v{t+14}, v{t+15}, v{t+13}""")
        def cmul(d, a, b):
            return [f'v_pk_mul_f32 {r2(d)}, {r2(a)}, {r2(b)}', f'v_pk_mul_f32 {r2(d+2)}, {r2(a)}, {r2(b+2)}',
                    f'v_pk_fma_f32 {r2(d)}, {r2(a+2)}, {r2(b+2)}, {r2(d)} neg_lo:[1,0,0] neg_hi:[1,0,0]', f'v_pk_fma_f32 {r2(d+2)}, {r2(a+2)}, {r2(b)}, {r2(d+2)}']
        ncv = [0]
        def put(src, row):
            c = CV[ncv[0] % 3]; ncv[0] += 1
            return [f'v_cvt_pk_bf16_f32 v{c}, v{src}, v{src+1}', f'v_cvt_pk_bf16_f32 v{c+1}, v{src+2}, v{src+3}', ('lg', f'ds_write_b64 v{WA}, {r2(c)} offset:{row*TRS}', 'w')]
        e(f'v_mov_b32 v{AT(0)}, 0x3f803f80\nv_mov_b32 v{AT(0)+1}, 0')
        e.lg(f'ds_write_b64 v{WA}, {r2(AT(0))} offset:{16*TRS}', 'w')
        for i in range(16):
            A = cmul(U[(i+1) & 1], U[i & 1], E16) if i < 15 else []
            B = cmul(AT(i+2), AT(i+1), AT(1)) if i < 15 else []
            for x, y in zip(A, B): e(x); e(y)
            e.do(put(U[i & 1], i))
            if i < 15: e.do(put(AT(i+1), 17+i))
        for k in range(8): e.lg(f'ds_read_b128 {r4(UF+4*k)}, v{RA[0]} offset:{64*k}', 'u')
        nrd = [0]
        def rd(h, row, sft):
            its = []
            for k in range(8):
                its.append(('lg', f'ds_read_b128 {r4(VF+4*((8*h+k) % 12))}, v{RA[sft]} offset:{row*TRS+64*k}', ('v', h, k)))
            return its
        rows = [16]; sf = [0, 1, 2, 2, 3, 3, 3, 3]; r = 0
        work = {}
        for h in range(1, 8):
            rows.append(r); n = (16 >> sf[h]) + 1
            its = []
            g = G[h & 1] if h > 1 else G[1]
            if h == 1: its += [f'v_mov_b32 v{E16+k}, v{G[1]+k}' for k in range(4)]
            else: its += cmul(g, G[(h-1) & 1], E16)
            its += put(g, r)
            for q in range(1, n):
                its += cmul(U[q & 1], g, AT(q << sf[h])) + put(U[q & 1], r+q)
            work[h] = its; r += n
        for it in rd(0, 16, 0): e.do(it)
        for it in work[1]: e.do(it)
        for h in range(8):
            nx = rd(h+1, rows[h+1], sf[h+1]) if h < 7 else []
            wk = work.get(h+2, [])
            per = -(-len(wk)//8)
            for k in range(8):
                if k < 4 and nx: e.do(nx[k])
                e.wait(lg=('v', h, k))
                e(f'v_mfma_f32_16x16x32_bf16 {r4(D+4*h)}, {r4(VF+4*((8*h+k) % 12))}, {r4(UF+4*k)}, {r4(D+4*h) if k else 0}')
                if k >= 4 and nx: e.do(nx[k])
                for it in wk[per*k:per*(k+1)]: e.do(it)
        t = AT(0)
        e(f"""v_add_f32 v{D}, v{D}, v{DS}
        v_and_b32 v{t}, 15, v{vL}
        v_bfe_u32 v{t+1}, v{vL}, 4, 1
        v_lshrrev_b32 v{t+2}, 5, v{vL}
        v_lshlrev_b32 v{t}, 5, v{t}
        v_lshl_add_u32 v{t}, v{t+1}, 9, v{t}
        v_lshl_add_u32 v{t}, v{t+2}, 4, v{t}
        v_add_u32 v{t}, s{sKB}, v{t}
        v_lshl_add_u32 v{t+1}, v{vL}, 4, s{sKB}
        v_bfe_u32 v{t+2}, v{vL}, 1, 2
        v_mul_u32_u24 v{t+2}, {KCS}, v{t+2}
        v_and_b32 v{t+3}, 1, v{vL}
        v_lshl_add_u32 v{t+2}, v{t+3}, 4, v{t+2}
        v_add_u32 v{t+2}, s{sKB}, v{t+2}
        v_cmp_gt_u32 vcc, 32, v{vL}
        v_add_u32 v{t+3}, {XAR}, v{t+1}""")
        for k in range(4): e(f'v_mov_b32 v{t+4+k}, 0')
        e(f'v_cndmask_b32 v{t+2}, v{t+2}, v{t+3}, vcc')
        e.lg(f'ds_write_b128 v{t+2}, {r4(t+4)}', 'w')
        for n in range(4):
            c = UF+4*n
            for k in range(4): e(f'v_cvt_pk_bf16_f32 v{c+k}, v{D+8*n+2*k}, v{D+8*n+2*k+1}')
            e(f'v_permlane16_swap_b32 v{c}, v{c+2}\nv_permlane16_swap_b32 v{c+1}, v{c+3}')
            e.lg(f'ds_write_b128 v{t}, {r4(c)} offset:{32+1024*n}', 'w')
        for n in range(4):
            e.lg(f'ds_read_b64 {r2(VF+8*n+2)}, v{t+1} offset:{24+1024*n}', ('c', n))
            e.lg(f'ds_read_b128 {r4(VF+8*n+4)}, v{t+1} offset:{32+1024*n}', ('c', n))
        for n in range(4):
            e.wait(lg=('c', n))
            c = VF+8*n+4; o = D+12*(n & 1)
            for k in range(4): e(f'v_alignbit_b32 v{o+k}, v{c+k}, v{c+k-1}, 16')
            e.lg(f'ds_write_b128 v{t+1}, {r4(o)} offset:{KCS+32+1024*n}', 'w')
            for k in range(4): e(f'v_mov_b32 v{o+4+k}, v{c+k-1}')
            e.lg(f'ds_write_b128 v{t+1}, {r4(o+4)} offset:{2*KCS+32+1024*n}', 'w')
            for k in range(4): e(f'v_alignbit_b32 v{o+8+k}, v{c+k-1}, v{c+k-2}, 16')
            e.lg(f'ds_write_b128 v{t+1}, {r4(o+8)} offset:{3*KCS+32+1024*n}', 'w')
        e.wait(lg='all')
    def conv_pre(self):
        t = vT
        self.e(f"""v_bfe_u32 v{t}, v{vL}, 2, 2
        v_mul_u32_u24 v{t}, {KCS}, v{t}
        v_and_b32 v{t+1}, 3, v{vL}
        v_lshl_add_u32 v{t}, v{t+1}, 3, v{t}
        v_and_b32 v{t+1}, 48, v{vL}
        v_sub_u32 v{t}, v{t}, v{t+1}
        v_add3_u32 v{vCA}, v{t}, s{sKB}, 56
        v_and_b32 v{t}, 15, v{vL}
        v_lshl_add_u32 v{t+1}, v{t}, 5, v{t+1}
        v_add_u32 v{t+1}, {XAR+32}, v{t+1}
        v_add_u32 v{vCB}, s{sKB}, v{t+1}
        v_bfe_u32 v{t+1}, v{vL}, 4, 1
        v_lshrrev_b32 v{t+2}, 5, v{vL}
        v_lshlrev_b32 v{t}, 5, v{t}
        v_lshl_add_u32 v{t}, v{t+1}, 9, v{t}
        v_lshl_add_u32 v{vYA}, v{t+2}, 4, v{t}""")
    CSET = [(224, 160), (192, 64)]
    def conv_reads(self, rho):
        A, B = self.CSET[rho & 1]; its = []
        for m in range(8):
            its.append(('lg', f'ds_read_b128 {r4(B+4*m)}, v{vCB} offset:{64*(8*m-rho+7)}', ('C', rho)))
            for h in range(2): its.append(('lg', f'ds_read_b64_tr_b16 {r2(A+4*m+2*h)}, v{vCA} offset:{64*(8*m+rho)+8*(1-h)}', ('C', rho)))
        return its
    def xt_items(self):
        T = sT
        ld = f'buffer_load_dwordx4 {r4(vPO)}, v{vH}, {srd(sWS)}, s{T} offen sc1'
        cmp = [f'v_xor_b32 v{vPO+k}, s{sTAG}, v{vPO+k}' for k in range(4)] + [f'v_or3_b32 v{vPO}, v{vPO}, v{vPO+1}, v{vPO+2}', f'v_or_b32 v{vPO}, v{vPO}, v{vPO+3}', f'v_cmp_ne_u32 vcc, 0, v{vPO}']
        self.slow.append('\n'.join(['SLOW_xt:', f's_mov_b32 s{sCNT}, 0', 'SPIN_xt:', ld, f's_add_u32 s{sCNT}, s{sCNT}, 1', f's_cmp_ge_u32 s{sCNT}, {SPIN}', 's_waitcnt vmcnt(0)', 's_cbranch_scc1 RET_xt'] + cmp + ['s_cbranch_vccnz SPIN_xt', 's_branch RET_xt']))
        iss = [f's_mov_b32 s{T}, {FLT}', ('vm', ld, 'PX')]
        chk = [('w', 'PX', None)] + cmp + ['s_cbranch_vccnz SLOW_xt\nRET_xt:', f'v_mul_u32_u24 v{vPO}, 9216, v{vL}',
               [f's_cmp_eq_u32 s{sB}, 0', f's_cselect_b32 s{T}, 0, {OOB}'], f's_add_u32 s{T}, s{T}, {EP_OFF}',
               ['s_mov_b64 exec, 1', ('vm', f'buffer_store_dword v{vTG}, off, {srd(sWS)}, s{T} sc1', 'E'), 's_mov_b64 exec, -1']]
        dma = []
        for n in range(4):
            dma.append([f's_add_u32 s{T+1}, s{sKB}, {XAR+512+1024*n}', f's_add_u32 s{T}, s{sXS}, {n*64*9216}', f's_min_u32 m0, s{T+1}, {CONV0+3*CSZ}',
                        ('vm', f'buffer_load_dwordx4 v{vPO}, {srd(sWS)}, s{T} offen sc1 lds', 'XT')])
        return iss, chk, dma
    def mid(self):
        e = self.e; o = self.o
        def items(sfx):
            i1, c1 = self.poll('h1'+sfx, 128); i2, c2 = self.poll('h2'+sfx, 256)
            return self.g2_dma(1) + self.g2_hload(2) + [i1] + self.g2_dma(2) + self.g2_hload(3) + c1 + self.flag(2) + self.g2_hload(4) + self.g2_hload(5) + [i2] + self.g2_hload(6) + c2
        yst = lambda n: ('vm', f'buffer_store_dwordx4 {r4(vE+8+4*n)}, v{vYA}, {srd(sWS)}, s{sYS} offen offset:{1024*n} sc1', 'Y')
        e(f's_cmp_eq_u32 s{sROLE}, 0\ns_cbranch_scc1 NOCONV')
        q0 = (list(e.vmq), list(e.lgq))
        st = Stream()
        for rho in range(8):
            A, B = self.CSET[rho & 1]
            g0 = len(st.m)
            st.before(g0, ('w', None, ('C', rho)))
            order = [(m, jb-m) for jb in range(8) for m in range(jb+1)]
            for m, n in order:
                a = r4(vACC+4*(m+n))
                st.mf(f'v_mfma_f32_16x16x32_bf16 {a}, {r4(A+4*m)}, {r4(B+4*n)}, {0 if rho == 0 and m == 0 else a}')
            if rho < 7:
                for k, it in enumerate(self.conv_reads(rho+1)): st.put(g0+1+k, it)
        g = 0
        for it in items('a'):
            g = st.place([it], g) + (o['mstep'] if not isinstance(it, (str, list)) and it[0] == 'vm' else 1)
        assert g < 288
        st.place(self.g2_bases(), 0)
        def yout(n):
            c = vE+8+4*n
            return [f'v_cvt_pk_bf16_f32 v{c+k}, v{vACC+8*n+2*k}, v{vACC+8*n+2*k+1}' for k in range(4)] + [f'v_permlane16_swap_b32 v{c}, v{c+2}', f'v_permlane16_swap_b32 v{c+1}, v{c+3}', yst(n)]
        for n in range(3):
            g = st.place(yout(n), max(g, 252+(2*n+2)*(2*n+3)//2+3))
        st.emit(e)
        e.do(yout(3))
        e('s_branch CONVDONE\nNOCONV:')
        q1 = list(e.vmq)
        e.vmq, e.lgq = q0
        e.do(self.g2_bases())
        for it in items('b'): e.do(it)
        for n in range(4): e.do(yst(n))
        assert e.vmq[-len(q1):] == q1 or q1[-len(e.vmq):] == e.vmq
        if len(q1) > len(e.vmq): e.vmq = q1
        e.wait(lg='all')
        e('CONVDONE:')
    def tag_ready(self):
        e = self.e
        e(f'''s_waitcnt lgkmcnt(0)
        s_mul_i32 s{sTAG}, s{sTAG}, 0x9E3779B1
        s_add_u32 s{sTAG}, s{sTAG}, 0x7F4A7C15
        v_mov_b32 v{vTG}, s{sTAG}''')
    def poll(self, name, off, va=vFA, so=f's{sFC}'):
        ld = f'buffer_load_dword v{vP}, v{va}, {srd(sWS)}, {so} offen offset:{off} sc1'
        self.slow.append(f'''SLOW_{name}:
        s_mov_b32 s{sCNT}, 0
        SPIN_{name}:
        {ld}
        s_add_u32 s{sCNT}, s{sCNT}, 1
        s_cmp_ge_u32 s{sCNT}, {SPIN}
        s_cbranch_scc1 RET_{name}
        s_waitcnt vmcnt(0)
        v_cmp_ne_u32 vcc, s{sTAG}, v{vP}
        s_cbranch_vccnz SPIN_{name}
        s_branch RET_{name}''')
        return ('vm', ld, ('P', name)), [('w', ('P', name), None), f'v_cmp_ne_u32 vcc, s{sTAG}, v{vP}', f's_cbranch_vccnz SLOW_{name}\nRET_{name}:']
    def flag(self, p):
        return [[('w', ('H', p), None), 's_mov_b64 exec, 1', ('vm', f'buffer_store_dword v{vTG}, off, {srd(sWS)}, s{sFP} offset:{128*p} sc1', ('F', p)), 's_mov_b64 exec, -1']]


    def g1_setup(self):
        e = self.e; o = self.o
        T = sT
        if o['rot']:
            e(f'''s_and_b32 s{T}, s{sJ}, 3
            s_lshl_b32 s{T}, s{T}, 1
            s_add_u32 s{T}, s{T}, s{sC}
            s_sub_u32 s{T+1}, s{T}, 9
            s_cmp_ge_u32 s{T}, 9
            s_cselect_b32 s{T}, s{T+1}, s{T}''')
        else:
            e(f's_mov_b32 s{T}, 0')
        e(f'''s_lshl_b32 s{T+2}, s{sRB}, 2
        s_add_u32 s{T+2}, s{T+2}, s{sW}
        s_mul_i32 s{T+3}, s{T+2}, {4*18432}
        s_mul_i32 s{sHST}, s{T+2}, {4*147456}
        s_mul_i32 s{T+4}, s{sFQ}, {36*1024}
        s_add_u32 s{sHST}, s{sHST}, s{T+4}
        s_add_u32 s{sHST}, s{sHST}, {H_OFF}
        ''')
        if XN_OFF: e(f's_add_u32 s{T+3}, s{T+3}, {XN_OFF}')
        for i in range(9):
            e(f'''s_mul_i32 s{sKW+i}, s{T}, {64*9216}
            s_lshl_b32 s{sKX+i}, s{T}, 11
            s_add_u32 s{sKX+i}, s{sKX+i}, s{T+3}''')
            if i < 8:
                e(f'''s_add_u32 s{T}, s{T}, 1
                s_cmp_eq_u32 s{T}, 9
                s_cselect_b32 s{T}, 0, s{T}''')
        e(f'''s_and_b32 s{T}, s{sW}, 1
        s_lshr_b32 s{T+1}, s{sW}, 1
        s_lshl_b32 s{sM1}, s{T+1}, 13
        s_lshl_b32 s{T+2}, s{T}, 10
        s_add_u32 s{sM1}, s{sM1}, s{T+2}
        s_lshl_b32 s{sM2}, s{T}, 11
        s_lshl_b32 s{T+2}, s{T+1}, 10
        s_add_u32 s{sM2}, s{sM2}, s{T+2}
        ''')
        e(f'''s_mul_i32 s{T+2}, s{sFQ}, 2304
        s_lshl_b32 s{T+3}, s{sC}, 7
        s_add_u32 s{T+3}, s{T+3}, s{T+2}
        s_mul_i32 s{T+4}, s{T}, {8*9216}
        s_add_u32 s{T+3}, s{T+3}, s{T+4}
        s_lshl_b32 s{T+4}, s{sC}, 5
        s_add_u32 s{T+4}, s{T+4}, s{T+2}
        s_add_u32 s{T+4}, s{T+4}, 2048
        s_mul_i32 s{T+5}, s{T}, {32*9216}
        s_add_u32 s{T+4}, s{T+4}, s{T+5}
        s_lshl_b32 s{T+5}, s{T}, 1
        ''')
        t = vT
        e(f'''v_lshrrev_b32 v{t}, 3, v{vL}
        v_bfe_u32 v{t+1}, v{vL}, 4, 1
        v_or_b32 v{t+1}, s{T+5}, v{t+1}
        v_bfe_u32 v{t+2}, v{vL}, 1, 2
        v_xor_b32 v{t+1}, v{t+1}, v{t+2}
        v_lshlrev_b32 v{t+1}, 5, v{t+1}
        v_and_b32 v{t+2}, 1, v{vL}
        v_lshl_add_u32 v{t+1}, v{t+2}, 4, v{t+1}
        v_mul_u32_u24 v{t}, 9216, v{t}
        v_add3_u32 v{vD}, v{t}, v{t+1}, s{T+3}
        ''')
        for n in range(1, 4): e(f'v_add_u32 v{vD+n}, {16*9216*n}, v{vD}')
        e(f'''v_lshrrev_b32 v{t}, 1, v{vL}
        v_bfe_u32 v{t+1}, v{vL}, 4, 1
        v_lshlrev_b32 v{t+1}, 2, v{t+1}
        v_xor_b32 v{t}, v{t}, v{t+1}
        v_mul_u32_u24 v{t}, 9216, v{t}
        v_lshlrev_b32 v{t+2}, 4, v{t+2}
        v_add3_u32 v{vD2}, v{t}, v{t+2}, s{T+4}
        ''')
        e(f'''v_lshrrev_b32 v{t}, 4, v{vL}
        v_bfe_u32 v{t+1}, v{vL}, 2, 2
        v_lshl_add_u32 v{t+2}, v{t}, 3, v{t+1}
        v_and_b32 v{t+3}, 3, v{vL}
        v_lshlrev_b32 v{t+3}, 3, v{t+3}
        v_lshl_add_u32 v{t+4}, v{t+2}, 7, v{t+3}
        v_bfe_u32 v{t+5}, v{vL}, 3, 2
        ''')
        for p in range(4):
            e(f'''v_xor_b32 v{t+6}, {p}, v{t+5}
            v_lshl_add_u32 v{vA+p}, v{t+6}, 5, v{t+4}
            v_add_u32 v{vA+4+p}, 0x10000, v{vA+p}''')
        e(f'''v_bfe_u32 v{t+5}, v{vL}, 4, 1
        v_lshlrev_b32 v{t+5}, 2, v{t+5}
        v_xor_b32 v{t+6}, v{t+2}, v{t+5}
        v_lshl_add_u32 v{vA2}, v{t+6}, 5, v{t+3}
        v_xor_b32 v{vA2+1}, 128, v{vA2}
        v_add_u32 v{vA2+2}, 0x10000, v{vA2}
        v_add_u32 v{vA2+3}, 0x10000, v{vA2+1}
        v_lshlrev_b32 v{vX}, 4, v{vL}
        v_mov_b32 v{vH}, v{vX}
        ''')
        for rb in range(1, 4):
            e(f'v_add_u32 v{vX+rb}, {18432*rb}, v{vX}\nv_add_u32 v{vH+rb}, {147456*rb}, v{vX}')

    def g1_dma(self, s):
        slot = (s % NS)*SLOT
        it = []
        if s == 9:
            it += [f'v_add_u32 v{vD+n}, 1024, v{vD+n}' for n in range(4)]
        if s < 18:
            for n in range(4):
                it.append(f's_add_u32 m0, s{sM1}, {slot+2048*n}')
                it.append(('vm', f'buffer_load_dwordx4 v{vD+n}, {srd(sWA)}, s{sKW+s%9} offen lds', ('W', s)))
        else:
            for n in range(4 if s < 20 else 1):
                it.append(f's_add_u32 m0, s{sM2}, {slot+4096*n}')
                it.append(('vm', f'buffer_load_dwordx4 v{vD2}, {srd(sWA)}, s{sKW+4*(s-18)+n} offen lds', ('W', s)))
        return it
    def g1_xload(self, i):
        sc = ' sc1' if self.o['sc1'] else ''
        return [('vm', f'buffer_load_dwordx4 {frag(4*(2*i+kk)+rb)}, v{vX+rb}, {srd(sWS)}, s{sKX+i} offen offset:{1024*kk}{sc}', ('X', i))
                for rb in range(4) for kk in range(2)]

    def g1_prefetch(self, a, b):
        e = self.e
        for s in range(a, b):
            for it in self.g1_dma(s):
                e.do(it)
                if isinstance(it, str): e('s_nop 0')

    def gemm1(self):
        e = self.e; o = self.o
        sc = ' sc1' if o['sc1'] else ''
        sets = []
        for p in range(2):
            for i in range(9):
                s = 9*p+i
                for b in range(4):
                    for m in range(2):
                        off = (s % NS)*SLOT + m*8192
                        base = vA+b+(4 if off >= 65536 else 0); off &= 65535
                        sets.append((s, i, 4*m+b, [(base, off+kk*4096+h*512) for kk in range(2) for h in range(2)], i == 0))
        for i in range(9):
            s = 18 + i//4
            for m in range(2):
                off = (s % NS)*SLOT + (i % 4)*4096 + m*1024
                hi = 2 if off >= 65536 else 0; off &= 65535
                sets.append((s, i, 4*m, [(vA2+hi+h, off+kk*2048) for kk in range(2) for h in range(2)], i == 0))
        st = Stream()
        def reads(n):
            wb = vW + 8*(n % 3)
            return [('lg', f'ds_read_b64_tr_b16 {r2(wb+2*j)}, v{b} offset:{off}', ('R', n)) for j, (b, off) in enumerate(sets[n][3])]
        for n, (s, i, blk, rd, first) in enumerate(sets):
            wb = vW + 8*(n % 3)
            for rb in range(4):
                acc = r4(vACC+16*blk+4*rb)
                for kk in range(2):
                    c = '0' if first and kk == 0 else acc
                    st.mf(f'v_mfma_f32_16x16x32_bf16 {acc}, {r4(wb+4*kk)}, {frag(4*(2*i+kk)+rb)}, {c}')
        NSET = len(sets)
        xup = o['xup']
        for i in range(xup):
            for it in self.g1_xload(i): e.do(it)
        e.wait(vm=('W', 0)); e('s_barrier')
        for it in reads(0) + reads(1): e.do(it)
        bar_at = {}
        for n in range(NSET):
            s, i = sets[n][0], sets[n][1]
            newx = s < 9 and (n == 0 or sets[n-1][0] != s)
            st.before(8*n, ('w', ('X', i) if newx else None, ('R', n)))
            g = 8*n
            if n+2 < NSET:
                if sets[n+2][0] != sets[n+1][0]:
                    s2 = sets[n+2][0]
                    st.put(g, ('w', ('W', s2), None)); st.put(g, 's_barrier'); bar_at[s2] = g
                    g += 1
                for j, it in enumerate(reads(n+2)): st.put(g+j+(j if g == 8*n else 0), it)
        for s2 in range(0, 21):
            g = bar_at.get(s2, 0)+1
            if s2+xup < 9:
                g = st.place(self.g1_xload(s2+xup), max(g, 64*s2), step=4)
            if s2 >= 1 and s2+4 <= 20:
                its = self.g1_dma(s2+4)
                gg = g
                for it in its:
                    gg = st.place([it], gg) + 1
                    if not isinstance(it, str): gg += 3
        def epi_block(b, T, half):
            its = []
            for rb in range(4):
                G = vACC+16*b+4*rb; U = G+64
                its.append([f'v_mul_f32 v{G+k}, v{G+k}, v{U+k}' for k in range(4)] +
                           [f'v_cvt_pk_bf16_f32 v{T(rb)+2*half+k}, v{G+2*k}, v{G+2*k+1}' for k in range(2)])
            return its
        for p in range(2):
            n0 = 72*p + 64
            for b in range(4):
                T = lambda rb: vE + 16*(b//2) + 4*rb
                its = []
                for rb, x in enumerate(epi_block(b, T, b & 1)):
                    its += x
                    if b & 1:
                        its.append(('vm', f'buffer_store_dwordx4 {r4(T(rb))}, v{vH+rb}, {srd(sWS)}, s{sT+9} offen offset:{1024*(b//2)}{sc}', ('H', p)))
                if b == 0:
                    its = [f's_lshl_b32 s{sT+9}, s{sC}, 11', f's_add_u32 s{sT+9}, s{sT+9}, s{sHST}'] + ([f's_add_u32 s{sT+9}, s{sT+9}, 16384'] if p else []) + its
                last = st.place(its, 8*(n0+2*b+2)+2)
                assert last < 8*(n0+2*b+8) - 2, (p, b, last)
        if o['g2']:
            g = st.place([f'v_mov_b32 v{vE+28+k}, -1' for k in range(4)], 8*84)
            st.place(self.sends(lambda k: vE+28, ('H', 1)), g+2, step=6)
            st.place(self.flag(0), 8*(72+16)+3)
            iss, chk = self.poll('h0', 0, vF0, '0')
            st.place([iss], 8*(72+40)+3); st.place(chk, 8*(72+52)+3)
            iss, chk, dma = self.xt_items()
            st.place(iss, 8*(72+8)+3); g = st.place(chk, 8*(72+20)+3)
            for k, d in enumerate(dma):
                g = max(g, bar_at[12+k]+40)
                for it in d: g = st.place([it], g)+1
                assert g < bar_at[13+k]
            g = 8*146+1
            for it in self.g2_dma(0) + self.g2_hload(0) + self.g2_hload(1):
                g = st.place([it], g) + (1 if isinstance(it, str) else o['lstep'])
            assert g < 8*162
            st.place(self.flag(1), 8*(144+o['f1at'])+3)
            st.place([('w', 'XT', None)] + self.conv_reads(0), 8*157)
        for n in o.get('g1st', []):
            st.before(8*n, self.stamp)
        st.emit(e)
        if o['g2']:
            e('s_barrier')
        e(f'''s_lshr_b32 s{sT}, s{sC}, 1
        s_lshl_b32 s{sT}, s{sT}, 10
        s_add_u32 s{sT}, s{sT}, s{sHST}
        s_and_b32 s{sT+1}, s{sC}, 1
        s_mul_i32 s{sT+1}, s{sT+1}, 147456
        s_add_u32 s{sT}, s{sT}, s{sT+1}
        s_add_u32 s{sT+9}, s{sT}, 32768
        s_nop 1''')
        T = lambda rb: vE + 2*rb
        for rb, x in enumerate(epi_block(0, T, 0)):
            e.do(x)
            if rb & 1:
                e.vm(f'buffer_store_dwordx4 {r4(vE+2*(rb-1))}, v{vH+rb-1}, {srd(sWS)}, s{sT+9} offen{sc}', ('H', 2))

    def g2_pre(self):
        e = self.e; o = self.o; T = sT; t = vT
        e(f"""s_and_b32 s{T}, s{sC}, 1
        s_lshl_b32 s{sMB}, s{sRB}, 1
        s_add_u32 s{sMB}, s{sMB}, s{T}
        s_lshr_b32 s{sNB}, s{sC}, 1
        s_lshl_b32 s{T+1}, s{sMB}, 2
        s_add_u32 s{T+2}, s{T+1}, s{sW}
        s_lshl_b32 s{sRW}, s{T+2}, 5
        s_mul_i32 s{T+2}, s{T+2}, {2*147456}
        s_mul_i32 s{T+3}, s{sFQ}, {36*1024}
        s_add_u32 s{T+2}, s{T+2}, s{T+3}
        s_add_u32 s{T+2}, s{T+2}, {H_OFF}
        s_lshl_b32 s{T+3}, s{sFQ}, 2
        s_add_u32 s{T+3}, s{T+3}, s{sNB}
        s_mul_i32 s{T+3}, s{T+3}, 36
        s_add_u32 s{T+3}, s{T+3}, s{sW}
        s_mul_i32 s{T+3}, s{T+3}, 9216
        s_add_u32 s{T+3}, s{T+3}, {PK_OFF}
        s_mul_i32 s{sM3}, s{sW}, 7168
        s_lshl_b32 s{sM4}, s{sW}, 11
        s_add_u32 s{sHL+8}, s{T+2}, {32*1024}
        s_add_u32 s{sK2+8}, s{T+3}, {32*9216}""")
        for s in range(4):
            if o['rot2']: e(f's_add_u32 s{T+4}, s{sNB}, {s}\ns_and_b32 s{T+4}, s{T+4}, 3')
            else: e(f's_mov_b32 s{T+4}, {s}')
            e(f"""s_lshl_b32 s{T+5}, s{T+4}, 12
            s_add_u32 s{sHL+s}, s{T+5}, s{T+2}
            s_add_u32 s{sHL+4+s}, s{sHL+s}, {16*1024}
            s_mul_i32 s{T+5}, s{T+4}, {4*9216}
            s_add_u32 s{sK2+s}, s{T+5}, s{T+3}
            s_add_u32 s{sK2+4+s}, s{sK2+s}, {16*9216}""")
        e(f"""s_lshl_b32 s{T+2}, s{sRB}, 2
        s_add_u32 s{T+2}, s{T+2}, s{sFQ}
        s_lshl_b32 s{T+2}, s{T+2}, 11
        s_add_u32 s{T+2}, s{T+2}, {FL_OFF}
        s_lshl_b32 s{T+3}, s{sW}, 9
        s_lshl_b32 s{T+4}, s{sC}, 2
        s_add_u32 s{T+3}, s{T+3}, s{T+4}
        s_add_u32 s{sFP}, s{T+2}, s{T+3}
        s_lshl_b32 s{T+4}, s{T}, 1
        s_lshr_b32 s{T+5}, s{sW}, 1
        s_add_u32 s{T+4}, s{T+4}, s{T+5}
        s_lshl_b32 s{T+4}, s{T+4}, 9
        s_add_u32 s{sFC}, s{T+2}, s{T+4}
        s_lshl_b32 s{T+2}, s{sRB}, 13
        s_add_u32 s{T+2}, s{T+2}, s{T+3}
        s_add_u32 s{T+2}, s{T+2}, {FL_OFF+128}
        s_lshl_b32 s{T+3}, s{sNB}, 2
        s_add_u32 s{T+3}, s{T+3}, s{sFQ}
        s_lshl_b32 s{T+3}, s{T+3}, 7
        s_add_u32 s{T+3}, s{T+3}, {FLY}
        s_lshl_b32 s{T+4}, s{sNB}, 6
        s_add_u32 s{T+4}, s{T+4}, {FLY+2048-128}
        v_and_b32 v{vFA}, 7, v{vL}
        v_lshlrev_b32 v{vFA}, 2, v{vFA}
        v_lshl_add_u32 v{t}, v{vL}, 2, s{T+3}
        v_lshl_add_u32 v{t+1}, v{vL}, 2, s{T+4}
        v_and_b32 v{t+2}, 3, v{vL}
        v_lshlrev_b32 v{t+2}, 11, v{t+2}
        v_add_u32 v{t+2}, s{T+2}, v{t+2}
        v_cmp_gt_u32 vcc, 48, v{vL}
        v_cndmask_b32 v{t+1}, v{t+2}, v{t+1}, vcc
        v_cmp_gt_u32 vcc, 32, v{vL}
        v_cndmask_b32 v{vFF}, v{t+1}, v{t}, vcc
        s_lshl_b32 s{T+2}, s{sFQ}, 11
        s_lshl_b32 s{T+3}, s{sNB}, 3
        s_add_u32 s{T+2}, s{T+2}, s{T+3}
        s_add_u32 s{T+2}, s{T+2}, {FL_OFF+2*512}
        v_bfe_u32 v{t}, v{vL}, 1, 3
        v_lshlrev_b32 v{t}, 13, v{t}
        v_and_b32 v{t+1}, 1, v{vL}
        v_lshlrev_b32 v{t+1}, 2, v{t+1}
        v_add3_u32 v{t}, v{t}, v{t+1}, s{T+2}
        v_add_u32 v{t+1}, s{sFC}, v{vFA}
        v_cndmask_b32 v{vF0}, v{t}, v{t+1}, vcc
        v_add_u32 v{vH4}, 4096, v{vH}""")
        e(f"""s_add_u32 s{T+1}, s{T+1}, s{sNB}
        s_lshl_b32 s{T+2}, s{T+1}, 4
        s_add_u32 s{T+2}, s{T+2}, s{sW}
        s_mul_i32 s{T+2}, s{T+2}, 6144
        s_add_u32 s{T+2}, s{T+2}, {P_OFF}
        s_mul_i32 s{sPI}, s{sFQ}, 24576
        s_add_u32 s{sPI}, s{sPI}, s{T+2}
        s_lshl_b32 s{sP8}, s{T+1}, 2
        s_add_u32 s{sP8}, s{sP8}, s{sW}
        s_lshl_b32 s{sP8}, s{sP8}, 12
        s_add_u32 s{sP8}, s{sP8}, {P8_OFF}
        s_lshl_b32 s{sPS+3}, s{sFQ}, 10
        s_add_u32 s{sPS+3}, s{sPS+3}, s{sP8}""")
        for uu in range(1, 4):
            e(f"""s_xor_b32 s{T+3}, s{sFQ}, {uu}
            s_mul_i32 s{T+3}, s{T+3}, 24576
            s_add_u32 s{T+3}, s{T+3}, s{T+2}
            s_add_u32 s{sPS+uu-1}, s{T+3}, {2048*(uu-1)}""")
    def pack(self):
        e = self.e; T = sT; t = vT
        e(f"""v_lshrrev_b32 v{t}, 2, v{vL}
        v_mul_u32_u24 v{t}, 1152, v{t}
        v_bfe_u32 v{t+1}, v{vL}, 1, 1
        v_bfe_u32 v{t+2}, v{vL}, 4, 1
        v_xor_b32 v{t+1}, v{t+1}, v{t+2}
        v_lshl_add_u32 v{t}, v{t+1}, 5, v{t}
        v_and_b32 v{t+1}, 1, v{vL}
        v_lshl_add_u32 v{t}, v{t+1}, 4, v{t}
        s_lshl_b32 s{T+2}, s{sNB}, 8
        v_lshrrev_b32 v{t+2}, 1, v{vL}
        v_mul_u32_u24 v{t+2}, 1152, v{t+2}
        v_lshl_add_u32 v{t+2}, v{t+1}, 4, v{t+2}
        s_lshl_b32 s{T+3}, s{sNB}, 5
        s_add_u32 s{T+3}, s{T+3}, 1024
        v_add_u32 v{vU8}, s{T+3}, v{t+2}""")
        for uu in range(4):
            e(f"""s_xor_b32 s{T+3}, s{sFQ}, {uu}
            s_lshl_b32 s{T+3}, s{T+3}, 6
            s_add_u32 s{T+3}, s{T+3}, s{T+2}
            v_add_u32 v{vU+2*uu}, s{T+3}, v{t}
            v_add_u32 v{vU+2*uu+1}, 18432, v{vU+2*uu}""")
        e(f"""s_lshl_b32 s{T+6}, s{sRH}, 1
        s_sub_u32 s{T+6}, s{sMB}, s{T+6}
        s_sub_u32 s{T+6}, s{T+6}, 2
        s_mul_i32 s{T}, s{sFQ}, 36
        s_add_u32 s{T}, s{T}, s{T+6}
        s_mul_i32 s{T}, s{T}, 36864
        s_add_u32 s{T+1}, s{T}, {12*36864}
        s_add_u32 s{T+2}, s{T}, {24*36864}
        s_lshl_b32 s{T+3}, s{sFQ}, 2
        s_add_u32 s{T+3}, s{T+3}, s{sNB}
        s_mul_i32 s{T+3}, s{T+3}, 36
        s_add_u32 s{T+3}, s{T+3}, s{T+6}
        s_mul_i32 s{T+3}, s{T+3}, 9216
        s_add_u32 s{T+3}, s{T+3}, {PK_OFF}
        s_add_u32 s{T+4}, s{T+3}, {12*9216}
        s_add_u32 s{T+5}, s{T+3}, {24*9216}
        v_add_u32 v{t}, 8192, v{vH}""")
        src = [vU8] + [vU+k for k in (2, 3, 4, 5, 6, 7, 0, 1)]
        ld = lambda q, n: e.vm(f'buffer_load_dwordx4 a[{36*q+4*n}:{36*q+4*n+3}], v{src[n]}, {srd(sWD)}, s{T+q} offen', ('PK', q))
        for q in range(3):
            for n in (1, 7, 2, 8, 3, 5, 4, 6, 0): ld(q, n)
        for q in range(3):
            e.wait(vm=('PK', q))
            for n in range(9):
                e.vm(f'buffer_store_dwordx4 a[{36*q+4*n}:{36*q+4*n+3}], v{(vH, vH4, t)[n//4]}, {srd(sWS)}, s{T+3+q} offen offset:{1024*(n % 4)} sc1', ('H', 0))
    def sends(self, reg, tag):
        return [('vm', f'buffer_store_dwordx4 {r4(reg(k))}, v{vH}, {srd(sWS)}, s{sPS+((k-1)//2 if k else 3)} offen offset:{1024*((k-1) & 1) if k else 0} sc1', tag) for k in range(7)]
    def g2_dma(self, s):
        slot = G2SLOT[s % 5]; it = []
        if s < 9:
            for n in range(7):
                if n % 4 == 0: it.append(f's_add_u32 m0, s{sM3}, {slot+1024*n}')
                it.append(('vm', f'buffer_load_dwordx4 v{vH4 if n >= 4 else vH}, {srd(sWS)}, s{sK2+s} offen offset:{1024*(n % 4)} sc1 lds', ('W2', s)))
        else:
            if s == 9: it.append(f'v_add_u32 v{vH4}, 3072, v{vH4}')
            for i in range(3):
                it.append(f's_add_u32 m0, s{sM4}, {slot+8192*i}')
                for hh in range(2):
                    it.append(('vm', f'buffer_load_dwordx4 v{vH4}, {srd(sWS)}, s{sK2+3*(s-9)+i} offen offset:{1024*hh} sc1 lds', ('W2', s)))
        return it
    def g2_hload(self, s):
        return [('vm', f'buffer_load_dwordx4 {frag(8*s+2*i+r)}, v{vH+r}, {srd(sWS)}, s{sHL+s} offen offset:{1024*i} sc1', ('HL', s)) for i in range(4) for r in range(2)]
    def g2_bases(self):
        t = vPO
        its = f"""v_lshrrev_b32 v{t}, 2, v{vL}
        v_and_b32 v{t+1}, 3, v{vL}
        v_lshlrev_b32 v{t+1}, 3, v{t+1}
        v_lshl_add_u32 v{t}, v{t}, 6, v{t+1}
        v_bfe_u32 v{t+1}, v{vL}, 4, 1
        v_lshl_add_u32 v{t}, v{t+1}, 5, v{t}
        v_xor_b32 v{t+1}, 32, v{t}
        v_lshlrev_b32 v{t+2}, 3, v{vL}""".split('\n')
        for k, b in enumerate((12288, 69632, 126976)):
            its += [f'v_add_u32 v{vB+2*k}, {b}, v{t}', f'v_add_u32 v{vB+2*k+1}, {b}, v{t+1}', f'v_add_u32 v{vB8[k]}, {b}, v{t+2}']
        return its
    def g2_fin_setup(self):
        t = vE+28; T = sT
        its = f"""v_and_b32 v{t}, 15, v{vL}
        v_lshrrev_b32 v{t+1}, 4, v{vL}
        v_mul_u32_u24 v{t+2}, 1152, v{t}
        v_lshl_add_u32 v{vAX}, v{t+1}, 4, v{t+2}
        v_lshlrev_b32 v{vAY}, 12, v{t}
        v_lshl_add_u32 v{vAY}, v{t+1}, 4, v{vAY}
        v_and_b32 v{t}, 1, v{t+1}
        v_lshrrev_b32 v{t+3}, 1, v{t+1}
        v_lshl_add_u32 v{vAO8}, v{t+3}, 4, v{t+2}
        v_lshl_add_u32 v{vAO}, v{t}, 5, v{vAO8}
        v_lshl_add_u32 v{vAX8}, v{t}, 4, v{t+2}
        v_mul_u32_u24 v{t}, 18432, v{t}
        v_mul_u32_u24 v{t+3}, 18432, v{t+3}
        v_add_u32 v{vAO8}, v{vAO8}, v{t}
        v_add_u32 v{vAX8}, v{vAX8}, v{t+3}
        v_and_b32 v{t}, 1, v{vL}
        v_lshlrev_b32 v{t}, 4, v{t}
        v_mov_b32 v{t+2}, 0x3f80
        v_lshlrev_b32 v{t}, v{t}, v{t+2}
        v_bfe_u32 v{t+2}, v{vL}, 1, 3
        v_lshlrev_b32 v{t+3}, 1, v{t+1}
        v_sub_u32 v{t+2}, v{t+2}, v{t+3}
        v_sub_u32 v{t+3}, v{t+2}, v{t+3}""".split('\n')
        for k in (0, 1, 4, 5): its.append(f'v_mov_b32 v{vSP+k}, 0')
        for j in range(2): its.append([f'v_cmp_eq_i32 vcc, {j}, v{t+2}', f'v_cndmask_b32 v{vSP+2+j}, 0, v{t}, vcc'])
        for b in range(2):
            for j in range(4): its.append([f'v_cmp_eq_i32 vcc, {j-8*b}, v{t+3}', f'v_cndmask_b32 v{vSN+4*b+j}, 0, v{t}, vcc'])
        its += f"""s_mul_i32 s{T+2}, s{sRW}, 1152
        s_lshl_b32 s{T+6}, s{sNB}, 2
        s_add_u32 s{T+6}, s{T+6}, s{sFQ}
        s_lshl_b32 s{T}, s{T+6}, 6
        s_add_u32 s{T}, s{T}, s{T+2}
        s_add_u32 s{T+1}, s{T}, 18432
        s_lshl_b32 s{T+5}, s{sNB}, 5
        s_add_u32 s{T+2}, s{T+2}, s{T+5}
        s_add_u32 s{T+2}, s{T+2}, 1024
        s_lshl_b32 s{T+5}, s{sRW}, 1
        s_add_u32 s{T+5}, s{T+5}, {Y_OFF}
        s_lshl_b32 s{T+3}, s{T+6}, 17
        s_add_u32 s{T+3}, s{T+3}, s{T+5}
        s_add_u32 s{T+4}, s{T+3}, 65536
        s_lshl_b32 s{T+6}, s{sNB}, 16
        s_add_u32 s{T+5}, s{T+5}, s{T+6}
        s_add_u32 s{T+5}, s{T+5}, {512*4096}
        s_add_u32 s{T+6}, s{sPI}, 4096""".split('\n')
        for uu in range(1, 4):
            its += [f's_xor_b32 s{T+6+uu}, s{sFQ}, {uu}', f's_lshl_b32 s{T+6+uu}, s{T+6+uu}, 10', f's_add_u32 s{T+6+uu}, s{T+6+uu}, s{sP8}',
                    [f's_cmp_eq_u32 s{sW}, s{sFQ}', f's_cselect_b32 s{T+6+uu}, s{T+6+uu}, {OOB}']]
        return its
    def gemm2(self):
        e = self.e; o = self.o; T = sT
        SB = {12288: (0, 0), 40960: (0, 28672), 69632: (1, 0), 98304: (1, 28672), 126976: (2, 0)}
        st = Stream()
        sets = []; m0 = []
        def add(s, acc, rds, fr, first):
            n = len(sets); sets.append((s, rds)); m0.append(len(st.m))
            wb = vW2 + 16*(n % 3)
            for i in range(4):
                for r in range(2):
                    a = r4(acc+4*r)
                    st.mf(f'v_mfma_f32_16x16x32_bf16 {a}, {r4(wb+4*i)}, {frag(fr+2*i+r)}, {"0" if first and i == 0 else a}')
        for s in range(9):
            k, off = SB[G2SLOT[s % 5]]
            for j in range(7):
                if j == 0: rds = [(vB8[k], off+7168*i+512*h) for i in range(4) for h in range(2)]
                else: rds = [(vB+2*k+((j-1) & 1), off+7168*i+1024+2048*((j-1)//2)+1024*h) for i in range(4) for h in range(2)]
                add(s, vA2C+8*j, rds, 8*s, s == 0)
        aB = vA2C+56
        xy0 = len(st.m)
        for p in range(2):
            for r in range(2): st.mf(f'v_mfma_f32_16x16x32_bf16 {r4(aB+8*p+4*r)}, {r4(vSN+4*p)}, {r4(vXY+4*r)}, 0')
        for p in range(2):
            for r in range(2): st.mf(f'v_mfma_f32_16x16x32_bf16 {r4(aB+8*p+4*r)}, {r4(vXY+8+4*p)}, {r4(vSN+4*r)}, {r4(aB+8*p+4*r)}')
        st.before(xy0, ('w', 'XY', None))
        for S in range(3):
            k, off = SB[G2SLOT[(9+S) % 5]]
            for i in range(3):
                for p in range(2):
                    add(9+S, aB+8*p, [(vB+2*k+p, off+8192*i+2048*ii+1024*h) for ii in range(4) for h in range(2)], 8*(3*S+i), False)
        NSET = len(sets)
        def reads(n):
            wb = vW2 + 16*(n % 3)
            return [('lg', f'ds_read_b64_tr_b16 {r2(wb+2*j)}, v{b} offset:{off}', ('R', n)) for j, (b, off) in enumerate(sets[n][1])]
        e.wait(vm=('W2', 0)); e('s_barrier')
        for it in reads(0) + reads(1): e.do(it)
        bar_at = {0: -1}
        for n in range(NSET):
            s = sets[n][0]
            newh = s < 8 and (n == 0 or sets[n-1][0] != s)
            st.before(m0[n], ('w', ('HL', s) if newh else None, ('R', n)))
            g = m0[n]
            if n+2 < NSET:
                gs = list(range(8))
                if sets[n+2][0] != sets[n+1][0]:
                    s2 = sets[n+2][0]
                    st.put(g, ('w', ('W2', s2), None)); st.put(g, 's_barrier'); bar_at[s2] = g
                    gs[0] = 1
                for j, it in enumerate(reads(n+2)): st.put(g+gs[j], it)
        def dma(s, gg):
            for it in self.g2_dma(s): gg = st.place([it], gg) + (1 if isinstance(it, str) else o['dstep'])
            return gg
        g3 = dma(3, 0); g3 = dma(4, max(g3, bar_at[1]+1))
        for s2 in range(2, 9): g3 = dma(s2+3, max(g3, bar_at[s2]+1))
        hl = self.g2_hload(7) + self.g2_hload(8)
        for k in range(4): st.place(hl[4*k:4*k+4], bar_at[k]+38, step=4)
        st.place([['s_mov_b64 exec, 1', ('vm', f'buffer_store_dword v{vTG}, off, {srd(sWS)}, s{sFY} sc1', 'FY'), 's_mov_b64 exec, -1']], bar_at[3]+2)
        last = st.place(self.g2_fin_setup(), 0)
        assert last < m0[28]
        iss, chk = self.poll('fin', 0, vFF, '0')
        st.place([iss], m0[30]); g = st.place(chk, m0[38])
        xl = lambda d, a, sr, so, sc='': ('vm', f'buffer_load_dwordx4 {r4(vXY+d)}, v{a}, {srd(sr)}, s{so} offen{sc}', 'XY')
        st.place([xl(0, vAX, sX, T), xl(4, vAX, sX, T+1), xl(16, vAX8, sX, T+2), xl(8, vAY, sWS, T+3, ' sc1'), xl(12, vAY, sWS, T+4, ' sc1'), xl(20, vAY, sWS, T+5, ' sc1')], g+1)
        its = [('w', ('HL', 8), None)]
        for i in range(4): its += [f'v_swap_b32 v{vXF+8*i+2}, v{vXF+8*i+4}', f'v_swap_b32 v{vXF+8*i+3}, v{vXF+8*i+5}']
        last = st.place(its, m0[52]); assert last < m0[56]-1
        snd = self.sends(lambda k: vE+4*k, 'S')
        cv = lambda d, a: f'v_cvt_pk_bf16_f32 v{d}, v{a}, v{a+1}'
        g = st.place([cv(vE+2*r+k, vA2C+4*r+2*k) for r in range(2) for k in range(2)] + [snd[0]], m0[57]+3)
        for uu in range(3):
            for p in range(2):
                j = 1+2*uu+p
                its = []
                for r in range(2):
                    its += [cv(vE+4+8*uu+4*r+2*p+k, vA2C+8*j+4*r+2*k) for k in range(2)]
                    if p: its.append(snd[1+2*uu+r])
                g = st.place(its, max(g, m0[56+j]+8+3))
        inl = [f'buffer_load_dwordx4 {r4(vIN+4*k)}, v{vH}, {srd(sWS)}, s{sPI if k < 4 else T+6} offen offset:{1024*(k & 3)} sc1' for k in range(6)]
        inl += [f'buffer_load_dwordx4 {r4(vIN+24+4*k)}, v{vH}, {srd(sWS)}, s{T+7+k} offen sc1' for k in range(3)]
        assert g < m0[63+o['inat']]
        st.place([('vm', x, 'IN') for x in inl], m0[63+o['inat']])
        for n in o.get('g2st', []):
            st.before(m0[n], self.stamp)
        st.emit(e)
        self.stamp()
        mx = [f'v_max3_u32 v{vP}, v{vIN}, v{vIN+1}, v{vIN+2}'] + [f'v_max3_u32 v{vP}, v{vP}, v{vIN+k}, v{vIN+k+1}' for k in range(3, 35, 2)] + [f'v_max_u32 v{vP}, v{vP}, v{vIN+35}', f'v_cmp_eq_u32 vcc, -1, v{vP}']
        self.slow.append('\n'.join(['SLOW_in:', f's_mov_b32 s{sCNT}, 0', 'SPIN_in:'] + inl + [f's_add_u32 s{sCNT}, s{sCNT}, 1', f's_cmp_ge_u32 s{sCNT}, {SPIN}', 's_waitcnt vmcnt(0)', 's_cbranch_scc1 RET_in'] + mx + ['s_cbranch_vccnz SPIN_in', 's_branch RET_in']))
        e.wait(vm='IN'); e.do(mx); e('s_cbranch_vccnz SLOW_in\nRET_in:')
        self.stamp()
        sel = lambda p: r4(vSP+2-2*p)
        mf = lambda a, x, y: e(f'v_mfma_f32_16x16x32_bf16 {r4(a)}, {x}, {y}, {r4(a)}')
        for r in range(2):
            for uu in range(3):
                for p in range(2): mf(aB+8*p+4*r, sel(p), r4(vIN+8*uu+4*r))
        D = vW2
        def fin(d, a0, a1, va, so):
            e.do([cv(d, a0), cv(d+1, a0+2), cv(d+2, a1), cv(d+3, a1+2), 's_nop 0', f'v_permlane16_swap_b32 v{d}, v{d+2}', f'v_permlane16_swap_b32 v{d+1}, v{d+3}'])
            e.vm(f'buffer_store_dwordx4 {r4(d)}, v{va}, {srd(sOUT)}, s{so} offen', 'O')
        e(f's_cmp_eq_u32 s{sW}, s{sFQ}\ns_nop 0')
        fin(D, aB, aB+8, vAO, T)
        fin(D+4, aB+4, aB+12, vAO, T+1)
        e('s_cbranch_scc0 NO8')
        for r in range(2):
            mf(vA2C+4*r, r4(vSN+4*r), r4(vXY+16)); mf(vA2C+4*r, r4(vXY+20), r4(vSN+4*r))
        for uu in range(3):
            for r in range(2): mf(vA2C+4*r, sel(r), r4(vIN+24+4*uu))
        e('s_nop 7')
        fin(D+8, vA2C, vA2C+4, vAO8, T+2)
        e('NO8:')

    def build(self):
        e = self.e; o = self.o
        self.setup()
        self.stamp()
        self.g1_setup()
        self.g1_prefetch(0, o['npre'])
        self.g2_pre()
        self.conv_pre()
        self.tag_ready()
        self.stamp()
        self.ln()
        self.stamp()
        e(f's_cmp_eq_u32 s{sW}, 3\ns_cbranch_scc0 NOSERV')
        q = list(e.vmq)
        self.service()
        e.vmq = q
        e('NOSERV:')
        self.g1_prefetch(o['npre'], 5)
        q = list(e.vmq)
        e(f's_cmp_eq_u32 s{sROLE}, 1\ns_cbranch_scc1 KGEN\ns_cmp_eq_u32 s{sW}, 2\ns_cbranch_scc0 JOIN')
        self.pack()
        e('s_branch JOIN\nKGEN:')
        e.vmq = list(q)
        self.kgen()
        e.vmq = q
        e('JOIN:')
        self.stamp()
        iss, chk = self.poll('xn', 0, vFA, f's{sLN}')
        e.do(iss); e.do(chk)
        self.stamp()
        self.gemm1()
        self.stamp()
        self.mid()
        self.stamp()
        self.gemm2()
        e.wait(vm='all')
        self.stamp()
        self.prof_out()
        e('END:\ns_endpgm')
        for x in self.slow: e(x)
        self.log = []
        return file_text([(KN, 256, 256, 160*1024, hz.fix(e.text(), self.log), 512, 256)])

if __name__ == '__main__':
    o = eval(sys.argv[2]) if len(sys.argv) > 2 else {}
    G = Gen(**o); open(sys.argv[1], 'w').write(G.build())
    for x in G.log: print(x)
```
